```python
import torch

def _softmax(x, axis=-1):
    return torch.softmax(x, dim=axis)
def _gelu(x):
    return torch.nn.functional.gelu(x, approximate="tanh")
def _silu(x):
    return torch.nn.functional.silu(x)
def _sigmoid(x):
    return torch.sigmoid(x)
def _layernorm(x, axis=-1, eps=1e-5):
    m = x.mean(dim=axis, keepdim=True)
    v = x.var(dim=axis, keepdim=True, unbiased=False)
    return (x - m) / torch.sqrt(v + eps)
def _scatter_add(tgt, idx, src, axis=0):
    return tgt.clone().index_add_(axis, idx, src)
def _segment_sum(src, seg, n):
    out = torch.zeros((n,) + src.shape[1:], dtype=src.dtype)
    return out.index_add_(0, seg, src)
def _pad(x, pw):
    flat = tuple(v for pair in reversed(pw) for v in pair)
    return torch.nn.functional.pad(x, flat)

kernel_name = 'sequential_preLN__spectral_fnet__moe_arch_mod__prompt'

def setup_inputs():

    _w = (lambda a: (lambda t: t.to(torch.bfloat16) if t.is_floating_point() else t)(torch.as_tensor(a)))
    def _A_setup():
        B, S, D = 1, 2048, 576
        ns = torch.arange(S)[:, None] * torch.arange(S)[None, :]
        nd = torch.arange(D)[:, None] * torch.arange(D)[None, :]
        Ws_re = torch.cos(-2.0 * torch.pi * ns / S).to(float)
        Ws_im = torch.sin(-2.0 * torch.pi * ns / S).to(float)
        Wd_re = torch.cos(-2.0 * torch.pi * nd / D).to(float)
        Wd_im = torch.sin(-2.0 * torch.pi * nd / D).to(float)
        return {
            "x": _w((lambda *s: torch.randn(*s, dtype=torch.bfloat16) * 0.05)(B, S, D)),
            "dft_seq_re": _w(Ws_re),
            "dft_seq_im": _w(Ws_im),
            "dft_hid_re": _w(Wd_re),
            "dft_hid_im": _w(Wd_im),
        }
    _A_in = _A_setup()

    def _B_setup():
        B, S, D, F, C = 1, 2048, 576, 4608, 1
        return {
            "x": _w((lambda *s: torch.randn(*s, dtype=torch.bfloat16) * 0.05)(B, S, D)),
            "w_r": _w((lambda *s: torch.randn(*s, dtype=torch.bfloat16) * 1.6)(D)),
            "w_gate": _w((lambda *s: torch.randn(*s, dtype=torch.bfloat16) * 0.4)(D, F)),
            "w_up": _w((lambda *s: torch.randn(*s, dtype=torch.bfloat16) * 0.4)(D, F)),
            "w_down": _w((lambda *s: torch.randn(*s, dtype=torch.bfloat16) * 0.4)(F, D)),
        }
    _B_in = _B_setup()

    return {
        "A_x": _A_in["x"],
        "A_dft_seq_re": _A_in["dft_seq_re"],
        "A_dft_seq_im": _A_in["dft_seq_im"],
        "A_dft_hid_re": _A_in["dft_hid_re"],
        "A_dft_hid_im": _A_in["dft_hid_im"],
        "B_x": _B_in["x"],
        "B_w_r": _B_in["w_r"],
        "B_w_gate": _B_in["w_gate"],
        "B_w_up": _B_in["w_up"],
        "B_w_down": _B_in["w_down"],
    }

def reference(A_x, A_dft_seq_re, A_dft_seq_im, A_dft_hid_re, A_dft_hid_im, B_x, B_w_r, B_w_gate, B_w_up, B_w_down):
    def _A_ref(x, dft_seq_re, dft_seq_im, dft_hid_re, dft_hid_im):
        a = torch.einsum("bsd,ed->bse", x, dft_hid_re)
        b = torch.einsum("bsd,ed->bse", x, dft_hid_im)
        y = torch.einsum("ts,bse->bte", dft_seq_re, a) - torch.einsum("ts,bse->bte", dft_seq_im, b)
        return y

    def _B_ref(x, w_r, w_gate, w_up, w_down):
        B, S, D = x.shape
        C = 1
        r = x @ w_r
        idx = torch.argsort(-r, axis=-1)[:, :C]
        idx_e = (lambda x, n, axis: torch.repeat_interleave(x, n, dim=axis))(idx.reshape(B, C, 1), D, axis=2)
        x_sel = (lambda x, i, axis: torch.take_along_dim(x, i, dim=axis))(x, idx_e, axis=1)
        g = _silu(x_sel @ w_gate)
        u = x_sel @ w_up
        y = (g * u) @ w_down
        r_sel = _sigmoid((lambda x, i, axis: torch.take_along_dim(x, i, dim=axis))(r, idx, axis=1))
        y = y * r_sel.reshape(B, C, 1)
        b_off = (torch.arange(B) * S).reshape(B, 1)
        flat_idx = (idx + b_off).reshape(B * C)
        zero = (x * 0.0).reshape(B * S, D)
        upd = _scatter_add(zero, flat_idx, y.reshape(B * C, D), axis=0)
        return x + upd.reshape(B, S, D)

    x = A_x
    h = x + _A_ref(_layernorm(x, axis=-1), A_dft_seq_re, A_dft_seq_im, A_dft_hid_re, A_dft_hid_im)
    h2 = h + _B_ref(_layernorm(h, axis=-1), B_w_r, B_w_gate, B_w_up, B_w_down)
    return h2
```

```python
import re

TRANS = ("v_exp_f32", "v_log_f32", "v_rcp_f32", "v_rsq_f32", "v_sqrt_f32", "v_sin_f32", "v_cos_f32", "v_rcp_iflag_f32")

def _regs(tok):
    tok = tok.strip()
    neg = tok.startswith("-")
    if neg: tok = tok[1:]
    m = re.fullmatch(r"(?:abs\()?\|?([vsa])(\d+)\|?\)?", tok)
    if m: return {m.group(1) + m.group(2)}
    m = re.fullmatch(r"([vsa])\[(\d+):(\d+)\]", tok)
    if m: return {m.group(1) + str(i) for i in range(int(m.group(2)), int(m.group(3)) + 1)}
    if tok in ("vcc", "vcc_lo", "vcc_hi"): return {"vcc"}
    if tok in ("exec", "exec_lo", "exec_hi"): return {"exec"}
    if tok == "m0": return {"m0"}
    return set()

class I:
    __slots__ = ("text", "mn", "ops", "mods", "w", "r", "kind", "states", "srcC", "srcAB", "passes", "dpp", "wide_data")

def parse(text):
    i = I()
    i.text = text
    t = text.split(";")[0].strip()
    parts = t.split(None, 1)
    i.mn = parts[0]
    rest = parts[1] if len(parts) > 1 else ""
    ops = []; cur = ""; depth = 0
    for ch in rest:
        if ch in "[(": depth += 1
        if ch in "])": depth -= 1
        if ch == "," and depth == 0:
            ops.append(cur.strip()); cur = ""
        else: cur += ch
    if cur.strip(): ops.append(cur.strip())
    mods = ""
    if ops:
        last = ops[-1].split(None, 1)
        if len(last) > 1:
            ops[-1] = last[0]; mods = last[1]
    i.ops = ops; i.mods = mods
    mn = i.mn
    base = re.sub(r"_(e32|e64|dpp|sdwa)$", "", mn)
    i.w = set(); i.r = set(); i.kind = "other"; i.states = 1; i.srcC = set(); i.srcAB = set(); i.passes = 0
    i.dpp = bool(re.search(r"(quad_perm|row_shl|row_shr|row_ror|wave_sh|wave_ro|row_mirror|row_half_mirror|row_bcast|row_newbcast)", mods))
    i.wide_data = set()
    R = [_regs(o) for o in ops]
    if mn == "s_nop":
        i.states = int(ops[0], 0) + 1; i.kind = "nop"
    elif mn.startswith("v_mfma"):
        i.kind = "sgemm" if re.search(r"_f32$", mn) and not re.search(r"(bf16|f16|i8|fp8|bf8)", mn) else "xdl"
        i.w = R[0]; i.srcAB = R[1] | R[2]; i.srcC = R[3]; i.r = i.srcAB | i.srcC
        if "32x32x16" in mn: i.passes = 8
        elif "16x16x32" in mn or "16x16x16" in mn: i.passes = 4
        elif "16x16x4_f32" in mn: i.passes = 8
        elif "32x32x2_f32" in mn: i.passes = 16
        elif "4x4x4" in mn: i.passes = 2
        else: raise Exception("unknown mfma " + mn)
    elif mn.startswith("v_"):
        i.kind = "valu"
        if base.startswith("v_cmp"):
            i.w = set(R[0]); i.r = set().union(*R[1:])
            if base.startswith("v_cmpx"): i.w |= {"exec"}
        elif base in ("v_readlane_b32", "v_readfirstlane_b32"):
            i.w = R[0]; i.r = set().union(*R[1:]); i.kind = "rdlane"
        elif base in ("v_writelane_b32",):
            i.w = R[0]; i.r = set().union(*R[1:]); i.kind = "wrlane"
        elif base.startswith("v_permlane"):
            i.w = R[0] | R[1]; i.r = R[0] | R[1]; i.kind = "permlane"
        elif base in ("v_add_co_u32", "v_sub_co_u32", "v_subrev_co_u32", "v_addc_co_u32", "v_subb_co_u32", "v_mad_u64_u32", "v_div_scale_f32"):
            i.w = R[0] | R[1]; i.r = set().union(*R[2:])
        elif base == "v_nop":
            pass
        else:
            i.w = R[0]; i.r = set().union(*R[1:]) if len(R) > 1 else set()
            if base in ("v_fmac_f32", "v_dot2c_f32_bf16", "v_pk_fmac_f16", "v_fmac_f16", "v_dot2c_f32_f16") or i.dpp: i.r |= R[0]
            if base == "v_cndmask_b32" and len(ops) == 3: i.r |= {"vcc"}
            if base == "v_div_fmas_f32": i.r |= {"vcc"}
        if base in TRANS: i.kind = "trans"
        if base.startswith("v_dot"): i.kind = "dot"
    elif mn.startswith("ds_"):
        i.kind = "ds"
        if mn.startswith("ds_read") or mn.startswith("ds_bpermute") or mn.startswith("ds_permute") or mn.startswith("ds_swizzle") or "_rtn" in mn:
            i.w = R[0]; i.r = set().union(*R[1:]) if len(R) > 1 else set()
            if "d16" in mn: i.r |= R[0]
        else:
            i.r = set().union(*R)
    elif mn.startswith("buffer_") or mn.startswith("global_") or mn.startswith("flat_"):
        i.kind = "vmem"
        lds = bool(re.search(r"\blds\b", mods)) or "_lds_" in mn
        if ("load" in mn) and not lds:
            i.w = R[0]; i.r = set().union(*R[1:])
            if "d16" in mn: i.r |= R[0]
        else:
            i.r = set().union(*R) if R else set()
            if lds: i.r |= {"m0"}; i.kind = "ldsdma"
            if "store" in mn and ("x4" in mn or "x3" in mn):
                i.wide_data = R[0] if mn.startswith("buffer_") else R[1]
            if "atomic" in mn and "sc0" in mods:
                i.w = R[0]
    elif mn.startswith("s_"):
        i.kind = "salu"
        if mn.startswith(("s_cmp", "s_cbranch", "s_branch", "s_waitcnt", "s_barrier", "s_endpgm", "s_setprio", "s_sleep", "s_bitcmp")):
            i.r = set().union(*R) if R else set()
        elif mn.startswith(("s_load", "s_buffer_load")):
            i.w = R[0]; i.r = set().union(*R[1:]); i.kind = "smem"
        else:
            i.w = R[0] if R else set(); i.r = set().union(*R[1:]) if len(R) > 1 else set()
            if "saveexec" in mn: i.w = i.w | {"exec"}; i.r |= {"exec"}
    return i

VALUISH = ("valu", "trans", "dot", "rdlane", "wrlane", "permlane")

def need(p, c):
    n = 0
    pv = p.kind in VALUISH
    cv = c.kind in VALUISH
    cm = c.kind in ("xdl", "sgemm")
    pw_v = {x for x in p.w if x[0] in "va" and x != "vcc"}
    pw_s = {x for x in p.w if x[0] == "s" or x == "vcc"}
    if pv:
        if cm and pw_v & c.r: n = max(n, 2)
        if cv and c.dpp and pw_v & c.r: n = max(n, 2)
        if c.kind == "rdlane" and pw_v & c.r: n = max(n, 1)
        if c.kind == "permlane" and pw_v & c.r: n = max(n, 2)
        if pw_s:
            if c.kind in ("vmem", "ldsdma") and pw_s & c.r: n = max(n, 5)
            if cv and pw_s & c.r: n = max(n, 4 if c.kind in ("rdlane", "wrlane") else 2)
            if c.mn.startswith("v_div_fmas") and "vcc" in pw_s: n = max(n, 4)
            if c.kind in ("salu", "smem") and pw_s & c.r: n = max(n, 1)
        if "exec" in p.w:
            if cv and c.dpp: n = max(n, 5)
            if c.kind in ("rdlane", "wrlane", "permlane") or cm: n = max(n, 4)
        if p.kind == "trans" and (cv or cm or c.kind in ("vmem", "ds")) and c.kind != "trans" and pw_v & c.r: n = max(n, 1)
        if p.kind == "trans" and c.kind == "trans" and pw_v & c.r: n = max(n, 1)
        if p.kind == "dot":
            if c.kind == "dot" and c.mn == p.mn:
                ab = set().union(*[_regs(o) for o in c.ops[1:3]])
                if pw_v & ab: n = max(n, 3)
            elif pw_v & (c.r | c.w): n = max(n, 3)
        if "sdwa" in p.mn or "op_sel" in p.mods and not p.mn.startswith("v_pk") and not p.mn.startswith("v_dot"):
            if cv and pw_v & (c.r | c.w): n = max(n, 1)
    if p.kind == "xdl":
        t = {2: 0, 4: 1, 8: 2, 16: 3}[p.passes]
        if cm:
            if p.w & c.srcC:
                if c.kind == "xdl" and c.srcC == p.w and c.passes == p.passes: n = max(n, [2, 0, 0, 0][t])
                elif c.kind == "xdl": n = max(n, [4, 6, 10, 18][t])
                else: n = max(n, [3, 6, 10, 18][t])
            if p.w & c.srcAB: n = max(n, [5, 8, 12, 20][t])
            if p.w & c.w and not (p.w & c.srcC): n = max(n, [5, 8, 12, 20][t])
        elif p.w & (c.r | c.w): n = max(n, [5, 8, 12, 20][t])
        if cv and p.srcC & c.w: n = max(n, [1, 3, 7, 15][t])
    if p.kind == "sgemm":
        t = {2: 0, 4: 1, 8: 2, 16: 3}[p.passes]
        if cm:
            if p.w & c.srcC:
                if c.kind == "sgemm" and c.srcC == p.w: n = max(n, [2, 0, 0, 0][t])
                elif c.kind == "sgemm": n = max(n, [2, 4, 8, 16][t])
            if p.w & c.srcAB: n = max(n, [4, 6, 10, 18][t])
            if p.w & c.w and not (p.w & c.srcC): n = max(n, [4, 6, 10, 18][t])
        elif p.w & (c.r | c.w): n = max(n, [4, 6, 10, 18][t])
    if p.kind == "salu" and "m0" in p.w and (c.kind == "ldsdma" or "addtid" in c.mn or c.mn.startswith("s_movrel")): n = max(n, 1)
    if p.wide_data and p.wide_data & c.w: n = max(n, 2 if cv else 1)
    return n

class Asm:
    def __init__(self):
        self.lines = []
        self.hist = []
        self.count = 0
        self.nops = 0
    def raw(self, s):
        self.lines.append(s)
    def label(self, name, flush=True):
        self.lines.append(name + ":")
        if flush: self.hist = [("LABEL",)]
    def __call__(self, text):
        for t in text.strip().split("\n"):
            t = t.strip()
            if not t or t.startswith(";"):
                continue
            self._emit(t)
    def _emit(self, t):
        c = parse(t)
        dist = 0; req = 0
        for p in reversed(self.hist):
            if isinstance(p, tuple): break
            n = need(p, c)
            if n - dist > req: req = n - dist
            dist += p.states
            if dist > 24: break
        while req > 0:
            k = min(req, 16)
            nop = parse("s_nop %d" % (k - 1))
            self.lines.append("    s_nop %d" % (k - 1)); self.hist.append(nop); self.nops += 1
            req -= k
        self.lines.append("    " + t)
        self.hist.append(c); self.count += 1
        if len(self.hist) > 64: self.hist = self.hist[-40:]
    def settle(self, n=20):
        self("s_nop 15");
        if n > 16: self("s_nop %d" % (n - 17))
    def text(self):
        return "\n".join(self.lines) + "\n"
```

```python
import sys, struct, math
from asmlib import Asm

NAME = "sequential_preLN__spectral_fnet__moe_arch_mod__prompt"
def f32(x): return "0x%08x" % struct.unpack("<I", struct.pack("<f", x))[0]

ZROW = 292
Z_OFF = 0
Z_BYTES = 64 * 32 * ZROW * 4
KEY_OFF = 0x300000
ROW_OFF = 0x310000
SLOT = 2560
WIN_OFF = 0x3F0000
PART_OFF = 0x400000
PART_BYTES = 288 * 576 * 4
X_BYTES = 2048 * 576 * 2
WS_LIMIT = 0x500000

OPT = dict(pf_code=True, pf_w=True, nt_x=True)
for a in sys.argv[1:]:
    if "=" in a:
        k, v = a.split("="); OPT[k] = int(v)

def srd(a, d, lo, hi, size, off=0):
    if off:
        a(f"s_add_u32 s{d}, s{lo}, {off}")
        a(f"s_addc_u32 s{d+1}, s{hi}, 0")
    else:
        a(f"s_mov_b32 s{d}, s{lo}")
        a(f"s_mov_b32 s{d+1}, s{hi}")
    a(f"s_mov_b32 s{d+2}, {size}")
    a(f"s_mov_b32 s{d+3}, 0x00020000")

def code_prefetch(a, start, end, vt, vd, spc, nthreads):
    a(f"s_getpc_b64 s[{spc}:{spc+1}]")
    lab = f".Lpc_{start}_{a.count}"
    a.raw(f"{lab}:")
    a(f"s_add_u32 s{spc}, s{spc}, {start}-{lab}")
    a(f"s_addc_u32 s{spc+1}, s{spc+1}, ({start}-{lab})>>32")
    a(f"v_lshlrev_b32 v{vt}, 6, v0")
    a(f"v_min_u32 v{vt}, {end}-{start}-4, v{vt}")
    a(f"global_load_dword v{vd}, v{vt}, s[{spc}:{spc+1}]")

def k1(a):
    WB, EXB, XB = 0, 46080, 56320
    a.raw(".p2align 8"); a.raw(".globl k1_kernel"); a.raw(".type k1_kernel,@function")
    a.label("k1_kernel")
    a("s_cmp_ge_u32 s2, 256")
    a("s_cbranch_scc1 .Lk1_end")
    a("s_load_dwordx2 s[4:5], s[0:1], 0")
    a("s_load_dwordx2 s[6:7], s[0:1], 96")
    a("s_load_dwordx4 s[24:27], s[0:1], 56")
    a("s_load_dwordx2 s[28:29], s[0:1], 72")
    npf = 0
    if OPT["pf_code"]:
        code_prefetch(a, "k1_kernel", ".Ltext_end", 1, 200, 30, 256); npf_code = 1
    a("v_and_b32 v1, 63, v0")
    a("v_lshrrev_b32 v4, 6, v0")
    a("v_and_b32 v2, 15, v0")
    a("v_readfirstlane_b32 s18, v4")
    a("v_lshrrev_b32 v3, 4, v1")
    a("s_and_b32 s16, s2, 7")
    a("s_lshl_b32 s16, s16, 2")
    a("s_lshr_b32 s19, s2, 6")
    a("s_add_u32 s16, s16, s19")
    a("s_bfe_u32 s17, s2, 0x30003")
    GR, GI = 100, 108
    a("s_lshl_b32 s19, s18, 4")
    a("v_add_u32 v5, s19, v2")
    a("v_lshl_add_u32 v6, v3, 8, s16")
    a("v_mul_u32_u24 v6, v6, v5")
    a("v_cvt_f32_u32 v6, v6")
    a("v_cvt_f32_u32 v7, v5")
    a(f"v_mul_f32 v10, {f32(1/2048)}, v6")
    a(f"v_mul_f32 v7, {f32(1/64)}, v7")
    for k in range(1, 8): a(f"v_add_f32 v{10+k}, v{9+k}, v7")
    for k in range(8): a(f"v_cos_f32 v{20+k}, v{10+k}")
    for k in range(8): a(f"v_sin_f32_e64 v{28+k}, -v{10+k}")
    a("v_lshlrev_b32 v8, 31, v5")
    a("v_lshrrev_b32 v9, 16, v8")
    a("v_or_b32 v8, v8, v9")
    for k in range(4):
        a(f"v_cvt_pk_bf16_f32 v{GR+k}, v{20+2*k}, v{21+2*k}")
        a(f"v_cvt_pk_bf16_f32 v{GI+k}, v{28+2*k}, v{29+2*k}")
    for k in range(4):
        a(f"v_xor_b32 v{GR+4+k}, v8, v{GR+k}")
        a(f"v_xor_b32 v{GI+4+k}, v8, v{GI+k}")
    a("v_lshrrev_b32 v10, 3, v1")
    a("v_and_b32 v11, 7, v1")
    a("v_lshrrev_b32 v12, 1, v10")
    a("v_xor_b32 v13, v11, v12")
    a("v_xor_b32 v14, 4, v13")
    a("v_add_u32 v10, s19, v10")
    a("v_lshl_add_u32 v10, v10, 5, s16")
    a("s_movk_i32 s20, 1152")
    a("v_mul_u32_u24 v10, s20, v10")
    a("v_lshl_add_u32 v13, v13, 4, v10")
    a("v_lshl_add_u32 v14, v14, 4, v10")
    a(f"v_add_u32 v14, {8*32*1152}, v14")
    a("s_mul_i32 s21, s18, 18432")
    a(f"s_add_u32 s21, s21, {XB}")
    a("s_waitcnt lgkmcnt(0)")
    srd(a, 8, 4, 5, X_BYTES)
    nt = " nt" if OPT["nt_x"] else ""
    for jj in (0, 8, 1, 7, 2, 6, 3, 5, 4):
        for h in (0, 1):
            a(f"s_add_u32 m0, s21, {h*9216 + 896*jj}")
            a(f"buffer_load_dwordx4 v{13+h}, s[8:11], 0 offen offset:{128*jj}{nt} lds")
    srd(a, 12, 6, 7, Z_BYTES)
    npf = 0
    if OPT["pf_w"]:
        npf = wprefetch(a, part=0, vbase=204, vt=15, nthreads=256, wg="s2")
    a("v_lshrrev_b32 v10, 2, v2")
    a("v_mul_u32_u24 v10, 10, v10")
    a("v_bfe_u32 v11, v2, 1, 1")
    a("s_mul_i32 s20, s17, 36")
    a("v_add3_u32 v10, v10, v11, s20")
    a("v_cvt_f32_u32 v10, v10")
    a(f"v_mul_f32 v16, {f32(1/576)}, v10")
    a("v_and_b32 v11, 1, v2")
    a("v_cvt_f32_u32 v11, v11")
    a("v_mul_f32 v17, 0.5, v11")
    a("v_mul_f32 v17, 0.5, v17")
    a("v_fma_f32 v98, v11, -2.0, 1.0")
    a("v_lshlrev_b32 v12, 3, v3")
    a("v_cvt_f32_u32 v12, v12")
    a("v_add_f32 v20, 0.5, v12")
    for k in range(1, 8): a(f"v_add_f32 v{20+k}, 1.0, v{19+k}")
    a("v_cmp_eq_u32 s[22:23], 14, v2")
    a(f"v_lshl_add_u32 v18, v1, 4, v1")
    a(f"v_lshlrev_b32 v18, 4, v1")
    a("s_mov_b32 s32, s18")
    a("s_nop 4")
    a.label(".Lk1_wloop")
    a("s_min_u32 s33, s32, 44")
    a("s_mul_i32 s34, s33, 57")
    a("s_lshr_b32 s34, s34, 9")
    a("s_mul_i32 s35, s34, 9")
    a("s_sub_u32 s35, s33, s35")
    a("s_lshl_b32 s35, s35, 5")
    a("v_cvt_f32_u32 v28, s34")
    a("v_cvt_f32_u32 v29, s35")
    a("s_cmp_eq_u32 s34, 4")
    a("s_cselect_b64 s[36:37], s[22:23], 0")
    a(f"v_fmamk_f32 v30, v28, {f32(2/576)}, v16")
    a("s_lshl_b32 s33, s33, 10")
    a("v_cndmask_b32 v30, v30, 0, s[36:37]")
    a(f"v_add_u32 v19, s33, v18")
    a("v_fma_f32 v32, v29, v30, v17")
    for k in range(4):
        a(f"v_pk_fma_f32 v[{34+2*k}:{35+2*k}], v[{20+2*k}:{21+2*k}], v[30:31], v[32:33] op_sel_hi:[1,0,0]")
    for k in range(8): a(f"v_cos_f32 v{34+k}, v{34+k}")
    for k in range(4): a(f"v_cvt_pk_bf16_f32 v{44+k}, v{34+2*k}, v{35+2*k}")
    a(f"ds_write_b128 v19, v[44:47] offset:{WB}")
    a("s_add_u32 s32, s32, 4")
    a("s_cmp_lt_u32 s32, 48")
    a("s_cbranch_scc1 .Lk1_wloop")
    PC, PS = 116, 126
    a("v_mul_u32_u24 v10, 10, v3")
    a("v_add_u32 v10, s20, v10")
    a("v_cvt_f32_u32 v10, v10")
    a(f"v_mul_f32 v20, {f32(1/1152)}, v10")
    for k in range(1, 10): a(f"v_add_f32 v{20+k}, {f32(1/1152)}, v{19+k}")
    for k in range(10): a(f"v_cos_f32 v{PC+k}, v{20+k}")
    for k in range(10): a(f"v_sin_f32 v{PS+k}, v{20+k}")
    a("v_lshrrev_b32 v10, 3, v2")
    a("v_mul_u32_u24 v10, 9216, v10") if False else a("v_mul_u32_u24 v10, 0x2400, v10")
    a("v_and_b32 v11, 7, v2")
    a("v_lshl_add_u32 v10, v11, 7, v10")
    a("v_lshrrev_b32 v11, 1, v2")
    a("v_xor_b32 v11, v11, v3")
    a("v_lshl_add_u32 v10, v11, 4, v10")
    a("v_add_u32 v4, s21, v10")
    a("v_xor_b32 v5, 64, v4")
    a("v_xor_b32 v6, 48, v4")
    a("v_xor_b32 v7, 112, v4")
    a("v_mov_b32 v8, 0")
    a("v_mov_b32 v9, 0")
    a("s_waitcnt lgkmcnt(0)")
    a("s_barrier")
    AU, AM = 136, 156
    U = [20, 28]; M = [24, 32]; MR = 36; WF = [40, 60]
    def reads(j):
        b = j & 1
        if j % 2 == 0:
            a(f"s_waitcnt vmcnt({max(18 - 4*(j//2+1), 0) + npf})")
        a(f"ds_read_b128 v[{U[b]}:{U[b]+3}], v{4+(j&1)} offset:{(j>>1)*1024}")
        jm = 17 - j
        a(f"ds_read_b128 v[{M[b]}:{M[b]+3}], v{6+(jm&1)} offset:{(jm>>1)*1024}")
        for t in range(5):
            a(f"ds_read_b128 v[{WF[b]+4*t}:{WF[b]+4*t+3}], v18 offset:{WB + (t*9+j)*1024}")
    reads(0)
    for j in range(9):
        b = j & 1
        if j < 8:
            reads(j + 1)
            a("s_waitcnt lgkmcnt(7)")
        else:
            a("s_waitcnt lgkmcnt(0)")
        for k in range(4):
            a(f"v_alignbit_b32 v{MR+k}, v{M[b]+3-k}, v{M[b]+3-k}, 16")
        for t in range(5):
            c = "0" if j == 0 else f"v[{AU+4*t}:{AU+4*t+3}]"
            a(f"v_mfma_f32_16x16x32_bf16 v[{AU+4*t}:{AU+4*t+3}], v[{U[b]}:{U[b]+3}], v[{WF[b]+4*t}:{WF[b]+4*t+3}], {c}")
            if t < 4: a(f"v_dot2c_f32_bf16 v8, v{U[b]+t}, v{U[b]+t}")
        for t in range(5):
            c = "0" if j == 0 else f"v[{AM+4*t}:{AM+4*t+3}]"
            a(f"v_mfma_f32_16x16x32_bf16 v[{AM+4*t}:{AM+4*t+3}], v[{MR}:{MR+3}], v[{WF[b]+4*t}:{WF[b]+4*t+3}], {c}")
            if t < 4: a(f"v_dot2c_f32_bf16 v9, v{M[b]+t}, v{M[b]+t}")
    a("v_add_f32 v8, v8, v9")
    a("v_mov_b32 v9, 1.0")
    a("v_mfma_f32_16x16x4_f32 v[24:27], v8, v9, 0")
    for r in (0, 2):
        a(f"v_pk_add_f32 v[{20+r}:{21+r}], v[{AU+16+r}:{AU+17+r}], v[{AM+16+r}:{AM+17+r}]")
    for r in range(4):
        a(f"v_mov_b32_dpp v{28+r}, v{20+r} row_newbcast:14 row_mask:0xf bank_mask:0xf")
    a(f"s_mov_b32 s36, {f32(1/576)}")
    for r in (0, 2):
        a(f"v_pk_mul_f32 v[{28+r}:{29+r}], v[{28+r}:{29+r}], s[36:37] op_sel_hi:[1,0]")
    for r in (0, 2):
        a(f"v_pk_mul_f32 v[{20+r}:{21+r}], v[{28+r}:{29+r}], v[{28+r}:{29+r}]")
    for r in (0, 2):
        a(f"v_pk_fma_f32 v[{24+r}:{25+r}], v[{24+r}:{25+r}], s[36:37], v[{20+r}:{21+r}] op_sel_hi:[1,0,1] neg_lo:[0,0,1] neg_hi:[0,0,1]")
    def bfr(base):
        a(f"v_cvt_pk_bf16_f32 v32, v{base}, v{base+1}")
        a(f"v_cvt_pk_bf16_f32 v33, v{base+2}, v{base+3}")
        a(f"v_lshlrev_b32 v{base}, 16, v32")
        a(f"v_and_b32 v{base+1}, 0xffff0000, v32")
        a(f"v_lshlrev_b32 v{base+2}, 16, v33")
        a(f"v_and_b32 v{base+3}, 0xffff0000, v33")
    for r in range(4): a(f"v_max_f32 v{24+r}, 0, v{24+r}")
    bfr(24)
    for r in range(4): a(f"v_add_f32 v{24+r}, {f32(1e-5)}, v{24+r}")
    bfr(24)
    for r in range(4): a(f"v_sqrt_f32 v{24+r}, v{24+r}")
    bfr(24)
    for r in range(4): a(f"v_rcp_f32 v{24+r}, v{24+r}")
    bfr(28)
    a("s_cmp_eq_u32 s17, 0")
    a(f"s_cselect_b32 s38, {f32(-576.0)}, 0")
    a("v_mov_b32 v34, s38")
    a("v_cmp_eq_u32 vcc, 0, v2")
    a("v_cndmask_b32 v34, 0, v34, vcc")
    a("v_lshrrev_b32 v36, 1, v3")
    a("s_lshl_b32 s38, s18, 1")
    a("v_add_u32 v36, s38, v36")
    a("v_lshrrev_b32 v37, 1, v2")
    a("v_xor_b32 v36, v36, v37")
    a("v_lshlrev_b32 v36, 4, v36")
    a("v_lshl_add_u32 v36, v2, 7, v36")
    a("v_and_b32 v38, 1, v3")
    a("v_lshl_add_u32 v36, v38, 3, v36")
    for t in range(5):
        for r in (0, 2):
            a(f"v_pk_fma_f32 v[{AU+4*t+r}:{AU+4*t+r+1}], v[{AM+4*t+r}:{AM+4*t+r+1}], v[98:99], v[{AU+4*t+r}:{AU+4*t+r+1}] op_sel_hi:[1,0,1]")
            if t == 0:
                a(f"v_pk_fma_f32 v[{AU+r}:{AU+r+1}], v[{28+r}:{29+r}], v[34:35], v[{AU+r}:{AU+r+1}] op_sel_hi:[1,0,1]")
            a(f"v_pk_mul_f32 v[{AU+4*t+r}:{AU+4*t+r+1}], v[{AU+4*t+r}:{AU+4*t+r+1}], v[{24+r}:{25+r}]")
        a(f"v_cvt_pk_bf16_f32 v{40+2*t}, v{AU+4*t}, v{AU+4*t+1}")
        a(f"v_cvt_pk_bf16_f32 v{41+2*t}, v{AU+4*t+2}, v{AU+4*t+3}")
        a(f"ds_write_b64 v36, v[{40+2*t}:{41+2*t}] offset:{EXB + t*2048}")
    a("v_xor_b32 v37, v37, v3")
    a("v_lshlrev_b32 v37, 4, v37")
    a("v_lshl_add_u32 v37, v2, 7, v37")
    a("v_xor_b32 v38, 64, v37")
    a("v_add_u32 v10, s19, v2")
    a("v_lshl_add_u32 v10, v10, 5, s16")
    a(f"s_movk_i32 s38, {ZROW*4}")
    a("v_mul_u32_u24 v10, s38, v10")
    a("v_mul_u32_u24 v11, 40, v3")
    a("s_lshl_b32 s38, s20, 2")
    a("v_add3_u32 v10, v10, v11, s38")
    a("s_waitcnt lgkmcnt(0)")
    a("s_barrier")
    AF = 40
    TR, TI = AU, AM
    for t in range(5):
        for ks in range(2):
            a(f"ds_read_b128 v[{AF+8*t+4*ks}:{AF+8*t+4*ks+3}], v{37+ks} offset:{EXB + t*2048}")
    for t in range(5):
        a(f"s_waitcnt lgkmcnt({8-2*t})")
        for ks in range(2):
            af = f"v[{AF+8*t+4*ks}:{AF+8*t+4*ks+3}]"
            c = "0" if ks == 0 else f"v[{TR+4*t}:{TR+4*t+3}]"
            a(f"v_mfma_f32_16x16x32_bf16 v[{TR+4*t}:{TR+4*t+3}], {af}, v[{GR+4*ks}:{GR+4*ks+3}], {c}")
            c = "0" if ks == 0 else f"v[{TI+4*t}:{TI+4*t+3}]"
            a(f"v_mfma_f32_16x16x32_bf16 v[{TI+4*t}:{TI+4*t+3}], {af}, v[{GI+4*ks}:{GI+4*ks+3}], {c}")
    ZZ = 20
    for t in range(5):
        for i in range(2):
            e = 2*t + i
            a(f"v_sub_f32 v32, v{TR+4*t+2*i}, v{TI+4*t+2*i+1}")
            a(f"v_add_f32 v33, v{TI+4*t+2*i}, v{TR+4*t+2*i+1}")
            a(f"v_mul_f32 v34, v32, v{PC+e}")
            a(f"v_mul_f32 v35, v32, v{PS+e}")
            a(f"v_fma_f32 v34, -v33, v{PS+e}, v34")
            a(f"v_fmac_f32 v35, v33, v{PC+e}")
            a(f"v_cvt_pk_bf16_f32 v{ZZ+e}, v34, v35")
    a(f"buffer_store_dwordx4 v[{ZZ}:{ZZ+3}], v10, s[12:15], 0 offen")
    a(f"buffer_store_dwordx2 v[{ZZ+4}:{ZZ+5}], v10, s[12:15], 0 offen offset:16")
    a("s_cmp_eq_u32 s17, 7")
    a("s_cselect_b32 s38, -1, 0xffff")
    a("s_mov_b32 exec_hi, s38")
    a(f"buffer_store_dwordx4 v[{ZZ+6}:{ZZ+9}], v10, s[12:15], 0 offen offset:24")
    a.label(".Lk1_end")
    a("s_endpgm")
    return dict(vgpr=240, lds=130048, grid=256, block=256)

def wprefetch(a, part, vbase, vt, nthreads, wg):
    n = 0
    mat = (24, 25) if part == 0 else (26, 27)
    a(f"s_lshr_b32 s40, {wg}, 3")
    a(f"s_and_b32 s41, {wg}, 7")
    a("s_mul_i32 s42, s40, %d" % (18 * 9216))
    a("s_mul_i32 s43, s41, 1152")
    a("s_add_u32 s42, s42, s43")
    a(f"s_add_u32 s44, s{mat[0]}, s42")
    a(f"s_addc_u32 s45, s{mat[1]}, 0")
    a(f"v_mul_u32_u24 v{vt}, 0xe39, v0")
    a(f"v_lshrrev_b32 v{vt}, 16, v{vt}")
    a(f"v_mul_u32_u24 v{vbase}, 18, v{vt}")
    a(f"v_sub_u32 v{vbase}, v0, v{vbase}")
    a(f"v_mul_u32_u24 v{vt}, 0x2400, v{vt}")
    a(f"v_lshl_add_u32 v{vt}, v{vbase}, 6, v{vt}")
    if nthreads == 256:
        a(f"global_load_dword v{vbase}, v{vt}, s[44:45] nt"); n += 1
        a(f"v_min_u32 v{vbase+1}, 67, v0")
        a(f"v_add_u32 v{vbase+1}, 256, v{vbase+1}")
        a(f"v_mul_u32_u24 v{vt}, 0xe39, v{vbase+1}")
        a(f"v_lshrrev_b32 v{vt}, 16, v{vt}")
        a(f"v_mul_u32_u24 v{vbase+2}, 18, v{vt}")
        a(f"v_sub_u32 v{vbase+1}, v{vbase+1}, v{vbase+2}")
        a(f"v_mul_u32_u24 v{vt}, 0x2400, v{vt}")
        a(f"v_lshl_add_u32 v{vt}, v{vbase+1}, 6, v{vt}")
        a(f"global_load_dword v{vbase+1}, v{vt}, s[44:45] nt"); n += 1
    else:
        a(f"v_min_u32 v{vt}, {17*9216+17*64}, v{vt}")
        a(f"global_load_dword v{vbase}, v{vt}, s[44:45] nt"); n += 1
    a("s_mul_i32 s42, s41, 663552")
    a("s_mul_i32 s43, s40, 10368")
    a("s_add_u32 s42, s42, s43")
    if part: a("s_add_u32 s42, s42, 331776")
    a("s_add_u32 s44, s28, s42")
    a("s_addc_u32 s45, s29, 0")
    a(f"v_min_u32 v{vt}, 161, v0")
    a(f"v_lshlrev_b32 v{vt}, 6, v{vt}")
    a(f"global_load_dword v{vbase+2}, v{vt}, s[44:45] nt"); n += 1
    return n

def wave_sum2(a, x, y, tmp=None):
    for m in ("row_shr:1", "row_shr:2", "row_shr:4", "row_shr:8"):
        for v in (x, y):
            if v is not None: a(f"v_add_f32_dpp v{v}, v{v}, v{v} {m} row_mask:0xf bank_mask:0xf bound_ctrl:1")
    for m in ("row_bcast:15 row_mask:0xa", "row_bcast:31 row_mask:0xc"):
        for v in (x, y):
            if v is not None: a(f"v_add_f32_dpp v{v}, v{v}, v{v} {m} bank_mask:0xf")

def k2(a):
    ROWB = 2320; BUF = 8 * ROWB; KEYL = 2 * BUF
    a.raw(".p2align 8"); a.raw(".globl k2_kernel"); a.raw(".type k2_kernel,@function")
    a.label("k2_kernel")
    a("s_cmp_ge_u32 s2, 256")
    a("s_cbranch_scc1 .Lk2_end")
    a("s_load_dwordx2 s[4:5], s[0:1], 0")
    a("s_load_dwordx2 s[6:7], s[0:1], 96")
    a("s_load_dwordx2 s[20:21], s[0:1], 48")
    a("s_load_dwordx2 s[22:23], s[0:1], 80")
    a("s_load_dwordx4 s[24:27], s[0:1], 56")
    a("s_load_dwordx2 s[28:29], s[0:1], 72")
    a("v_and_b32 v1, 63, v0")
    a("v_lshrrev_b32 v4, 6, v0")
    a("v_and_b32 v2, 15, v0")
    a("v_readfirstlane_b32 s18, v4")
    a("v_lshrrev_b32 v3, 4, v1")
    a("s_and_b32 s16, s2, 7")
    a("s_lshl_b32 s16, s16, 2")
    a("s_lshr_b32 s17, s2, 6")
    a("s_add_u32 s16, s16, s17")
    a("s_bfe_u32 s17, s2, 0x20003")
    a("s_sub_u32 s19, 64, s16")
    a("s_cmp_eq_u32 s16, 0")
    a("s_cselect_b32 s19, 32, s19")
    a("s_bitcmp1_b32 s2, 5")
    a("s_cselect_b32 s16, s19, s16")
    a("s_sub_u32 s19, 64, s16")
    a("s_and_b32 s19, s19, 63")
    a("s_and_b32 s30, s18, 1")
    a("s_bfe_u32 s31, s18, 0x10001")
    a("s_lshr_b32 s32, s18, 2")
    a("s_cmp_eq_u32 s32, 1")
    a("s_cselect_b32 s33, s19, s16")
    a("s_cselect_b32 s34, -64, 64")
    a("s_cselect_b64 s[36:37], -1, 0")
    a("s_lshl_b32 s33, s33, 5")
    a("s_lshl_b32 s35, s30, 4")
    a("s_add_u32 s33, s33, s35")
    a("v_lshl_add_u32 v5, v3, 2, s33")
    a(f"s_movk_i32 s38, {ZROW*4}")
    a("v_mul_u32_u24 v5, s38, v5")
    a("v_sub_u32 v6, 16, v2")
    a("v_cndmask_b32 v6, v2, v6, s[36:37]")
    a("s_mul_i32 s38, s31, 144")
    a("v_add_u32 v6, s38, v6")
    a("v_lshl_add_u32 v5, v6, 2, v5")
    a("s_lshl_b32 s39, s17, 3")
    a("s_add_u32 s46, s39, s18")
    a("s_lshl_b32 s46, s46, 6")
    a("s_add_u32 s46, s46, s16")
    a("s_mul_i32 s47, s46, 1152")
    a("v_lshlrev_b32 v7, 3, v1")
    a("v_lshlrev_b32 v8, 1, v1")
    a("s_waitcnt lgkmcnt(0)")
    srd(a, 8, 6, 7, WS_LIMIT)
    ZF = 64
    for tl in range(9):
        for jj in range(4):
            a(f"buffer_load_dword v{ZF+4*tl+jj}, v5, s[8:11], 0 offen offset:{jj*ZROW*4 + tl*64}")
    srd(a, 12, 4, 5, X_BYTES)
    a("buffer_load_dwordx2 v[20:21], v7, s[12:15], s47 offen")
    a("buffer_load_dwordx2 v[22:23], v7, s[12:15], s47 offen offset:512")
    a("buffer_load_ushort v24, v8, s[12:15], s47 offen offset:1024")
    srd(a, 12, 20, 21, 1152)
    a("buffer_load_dwordx2 v[26:27], v7, s[12:15], 0 offen")
    a("buffer_load_dwordx2 v[28:29], v7, s[12:15], 0 offen offset:512")
    a("buffer_load_ushort v25, v8, s[12:15], 0 offen offset:1024")
    npf = 6
    if OPT["pf_w"]:
        npf += wprefetch(a, part=1, vbase=110, vt=9, nthreads=512, wg="s2")
    srd(a, 12, 22, 23, X_BYTES)
    a("v_and_b32 v10, 7, v2")
    a("v_add_u32 v10, s39, v10")
    a("v_lshl_add_u32 v10, v10, 6, s16")
    a("v_sub_u32 v11, 0x800, v10")
    a("v_cndmask_b32 v10, v10, v11, s[36:37]")
    a("v_bfe_u32 v10, v10, 6, 5")
    a("v_lshl_add_u32 v11, v3, 2, s35")
    a("v_mul_u32_u24 v11, v11, v10")
    a("v_cvt_f32_u32 v11, v11")
    a("v_cvt_f32_u32 v10, v10")
    a(f"v_mul_f32 v12, {f32(1/32)}, v11")
    a(f"v_mul_f32 v10, {f32(1/32)}, v10")
    for k in range(1, 4): a(f"v_add_f32 v{12+k}, v{11+k}, v10")
    for k in range(4): a(f"v_cos_f32 v{32+k}, v{12+k}")
    for k in range(4): a(f"v_sin_f32 v{36+k}, v{12+k}")
    for k in range(4): a(f"v_cvt_pk_bf16_f32 v{16+k}, v{32+k}, v{36+k}")
    a("s_sub_u32 s48, 560, s38")
    a("s_cmp_eq_u32 s32, 1")
    a("s_cselect_b32 s48, s48, s38")
    a("s_lshl_b32 s48, s48, 2")
    a(f"s_mul_i32 s49, s30, {BUF}")
    a("s_add_u32 s48, s48, s49")
    a(f"s_movk_i32 s49, {ROWB}")
    a("v_mul_u32_u24 v10, s49, v2")
    a("v_lshl_add_u32 v10, v3, 4, v10")
    a("v_add_u32 v10, s48, v10")
    a("v_mov_b32 v11, 0")
    a(f"v_mov_b32 v12, {KEYL}")
    a("ds_write_b32 v12, v11")
    YD = 120
    for tl in range(9):
        a(f"s_waitcnt vmcnt({32-4*tl+npf})")
        a(f"v_mfma_f32_16x16x32_bf16 v[{YD+4*tl}:{YD+4*tl+3}], v[{ZF+4*tl}:{ZF+4*tl+3}], v[16:19], 0")
    a("s_mov_b32 exec_lo, 0x00ff00ff")
    a("s_mov_b32 exec_hi, 0x00ff00ff")
    for tl in range(9):
        a(f"ds_write_b128 v10, v[{YD+4*tl}:{YD+4*tl+3}]")
        if tl < 8: a("v_add_u32 v10, s34, v10")
    a("s_mov_b64 exec, -1")
    a(f"s_mul_i32 s48, s18, {ROWB}")
    a("v_lshl_add_u32 v10, v1, 4, s48")
    a("v_lshl_add_u32 v11, v1, 2, s48")
    a("s_waitcnt lgkmcnt(0)")
    a("s_barrier")
    a("ds_read_b128 v[32:35], v10")
    a(f"ds_read_b128 v[44:47], v10 offset:{BUF}")
    a("ds_read_b128 v[36:39], v10 offset:1024")
    a(f"ds_read_b128 v[48:51], v10 offset:{BUF+1024}")
    a("ds_read_b32 v40, v11 offset:2048")
    a(f"ds_read_b32 v52, v11 offset:{BUF+2048}")
    a(f"s_waitcnt vmcnt({npf-6})")
    for k in range(4):
        a(f"v_lshlrev_b32 v{54+2*k}, 16, v{20+k}")
        a(f"v_and_b32 v{55+2*k}, 0xffff0000, v{20+k}")
    a("v_lshlrev_b32 v62, 16, v24")
    a("s_waitcnt lgkmcnt(0)")
    for k in range(4):
        a(f"v_pk_add_f32 v[{32+2*k}:{33+2*k}], v[{32+2*k}:{33+2*k}], v[{44+2*k}:{45+2*k}]")
    a("v_add_f32 v40, v40, v52")
    for k in range(4):
        a(f"v_pk_add_f32 v[{32+2*k}:{33+2*k}], v[{32+2*k}:{33+2*k}], v[{54+2*k}:{55+2*k}]")
    a("v_add_f32 v40, v40, v62")
    for k in range(4): a(f"v_cvt_pk_bf16_f32 v{20+k}, v{32+2*k}, v{33+2*k}")
    a("v_cvt_pk_bf16_f32 v24, v40, 0")
    a("v_mov_b32 v44, 0x3f803f80")
    a("v_mov_b32 v42, 0")
    a("v_mov_b32 v43, 0")
    for k in range(5):
        a(f"v_dot2c_f32_bf16 v42, v{20+k}, v44")
        a(f"v_dot2c_f32_bf16 v43, v{20+k}, v{20+k}")
    for k in range(4):
        a(f"v_lshlrev_b32 v{32+2*k}, 16, v{20+k}")
        a(f"v_and_b32 v{33+2*k}, 0xffff0000, v{20+k}")
    a("v_lshlrev_b32 v40, 16, v24")
    wave_sum2(a, 42, 43)
    a("v_readlane_b32 s50, v42, 63")
    a("v_readlane_b32 s51, v43, 63")
    a(f"v_mov_b32 v45, {f32(1/576)}")
    a("v_mul_f32 v42, s50, v45")
    a("v_mul_f32 v43, s51, v45")
    a("v_fma_f32 v43, -v42, v42, v43")
    a("v_max_f32 v43, 0, v43")
    a("v_cvt_pk_bf16_f32 v44, v42, v43")
    a("v_lshlrev_b32 v42, 16, v44")
    a("v_and_b32 v43, 0xffff0000, v44")
    a(f"v_add_f32 v43, {f32(1e-5)}, v43")
    a("v_cvt_pk_bf16_f32 v44, v43, v43")
    a("v_lshlrev_b32 v43, 16, v44")
    a("v_sqrt_f32 v43, v43")
    a("v_cvt_pk_bf16_f32 v44, v43, v43")
    a("v_lshlrev_b32 v43, 16, v44")
    a("v_rcp_f32 v46, v43")
    for k in range(4):
        a(f"v_pk_add_f32 v[{54+2*k}:{55+2*k}], v[{32+2*k}:{33+2*k}], v[42:43] op_sel_hi:[1,0] neg_lo:[0,1] neg_hi:[0,1]")
    a("v_sub_f32 v62, v40, v42")
    for k in range(4): a(f"v_cvt_pk_bf16_f32 v{64+k}, v{54+2*k}, v{55+2*k}")
    a("v_cvt_pk_bf16_f32 v68, v62, 0")
    for k in range(4):
        a(f"v_lshlrev_b32 v{54+2*k}, 16, v{64+k}")
        a(f"v_and_b32 v{55+2*k}, 0xffff0000, v{64+k}")
    a("v_lshlrev_b32 v62, 16, v68")
    for k in range(4):
        a(f"v_pk_mul_f32 v[{54+2*k}:{55+2*k}], v[{54+2*k}:{55+2*k}], v[46:47] op_sel_hi:[1,0]")
    a("v_mul_f32 v62, v62, v46")
    for k in range(4): a(f"v_cvt_pk_bf16_f32 v{64+k}, v{54+2*k}, v{55+2*k}")
    a("v_cvt_pk_bf16_f32 v68, v62, 0")
    a("v_mov_b32 v42, 0")
    for k in range(4): a(f"v_dot2c_f32_bf16 v42, v{64+k}, v{26+k}")
    a("v_dot2c_f32_bf16 v42, v68, v25")
    for k in range(4):
        a(f"v_lshlrev_b32 v{54+2*k}, 16, v{64+k}")
        a(f"v_and_b32 v{55+2*k}, 0xffff0000, v{64+k}")
    a("v_lshlrev_b32 v62, 16, v68")
    wave_sum2(a, 42, None)
    for k in range(4):
        a(f"v_pk_add_f32 v[{54+2*k}:{55+2*k}], v[{54+2*k}:{55+2*k}], v[{32+2*k}:{33+2*k}]")
    a("v_add_f32 v62, v62, v40")
    for k in range(4): a(f"v_cvt_pk_bf16_f32 v{70+k}, v{54+2*k}, v{55+2*k}")
    a("v_cvt_pk_bf16_f32 v74, v62, 0")
    a("buffer_store_dwordx2 v[70:71], v7, s[12:15], s47 offen")
    a("buffer_store_dwordx2 v[72:73], v7, s[12:15], s47 offen offset:512")
    a("buffer_store_short v74, v8, s[12:15], s47 offen offset:1024")
    a("v_readlane_b32 s50, v42, 63")
    a("s_ashr_i32 s51, s50, 31")
    a("s_or_b32 s51, s51, 0x80000000")
    a("s_xor_b32 s51, s51, s50")
    a("s_andn2_b32 s51, s51, 0x7ff")
    a("s_or_b32 s51, s51, s46")
    a("v_mov_b32 v44, s51")
    a("ds_max_u32 v12, v44")
    a("s_waitcnt lgkmcnt(0)")
    a("s_barrier")
    a("ds_read_b32 v45, v12")
    a("s_waitcnt lgkmcnt(0)")
    a("v_readfirstlane_b32 s52, v45")
    a("s_cmp_lg_u32 s52, s51")
    a("s_cbranch_scc1 .Lk2_end")
    a("s_lshl_b32 s53, s16, 2")
    a("s_add_u32 s53, s53, s17")
    a(f"s_mul_i32 s54, s53, {SLOT}")
    a(f"s_add_u32 s54, s54, {ROW_OFF}")
    a("buffer_store_dwordx2 v[64:65], v7, s[8:11], s54 offen")
    a("buffer_store_dwordx2 v[66:67], v7, s[8:11], s54 offen offset:512")
    a("buffer_store_short v68, v8, s[8:11], s54 offen offset:1024")
    a("buffer_store_dwordx2 v[20:21], v7, s[8:11], s54 offen offset:1152")
    a("buffer_store_dwordx2 v[22:23], v7, s[8:11], s54 offen offset:1664")
    a("buffer_store_short v24, v8, s[8:11], s54 offen offset:2176")
    a("v_mov_b32 v46, s50")
    a("v_mov_b32 v47, s46")
    a("v_mov_b32 v48, 0")
    a("s_lshl_b32 s53, s53, 2")
    a(f"s_add_u32 s53, s53, {KEY_OFF}")
    a("s_mov_b64 exec, 1")
    a("buffer_store_dwordx2 v[46:47], v48, s[8:11], s54 offen offset:2304")
    a("buffer_store_dword v44, v48, s[8:11], s53 offen")
    a.label(".Lk2_end")
    a("s_endpgm")
    return dict(vgpr=160, lds=2*BUF+16, grid=256, block=512)

def k3(a):
    a.raw(".p2align 8"); a.raw(".globl k3_kernel"); a.raw(".type k3_kernel,@function")
    a.label("k3_kernel")
    a("s_cmp_ge_u32 s2, 144")
    a("s_cbranch_scc1 .Lk3_end")
    a("s_load_dwordx2 s[6:7], s[0:1], 96")
    a("s_load_dwordx4 s[24:27], s[0:1], 56")
    a("s_load_dwordx2 s[28:29], s[0:1], 72")
    a("v_and_b32 v1, 63, v0")
    a("v_lshrrev_b32 v4, 6, v0")
    a("v_and_b32 v2, 15, v0")
    a("v_readfirstlane_b32 s18, v4")
    a("v_lshrrev_b32 v3, 4, v1")
    a("s_and_b32 s16, s2, 7")
    a("s_mul_i32 s16, s16, 18")
    a("s_lshr_b32 s17, s2, 3")
    a("s_add_u32 s16, s16, s17")
    a("v_lshrrev_b32 v4, 3, v2")
    a("v_lshl_add_u32 v4, v4, 2, v3")
    a("s_lshl_b32 s19, s18, 6")
    a("v_add_u32 v5, s19, v4")
    a("v_mul_u32_u24 v6, 0x2400, v5")
    a("v_and_b32 v7, 3, v2")
    a("v_lshl_add_u32 v6, v7, 4, v6")
    a("s_lshl_b32 s20, s16, 6")
    a("v_add_u32 v6, s20, v6")
    a("v_mov_b32 v7, 0")
    a("v_lshlrev_b32 v12, 4, v1")
    a("s_lshl_b32 s21, s16, 5")
    a("v_add_u32 v8, s21, v4")
    a("v_mul_u32_u24 v8, 0x480, v8")
    a("v_and_b32 v9, 7, v2")
    a("v_lshl_add_u32 v8, v9, 4, v8")
    a("s_lshl_b32 s21, s18, 7")
    a("v_add_u32 v8, s21, v8")
    a("v_and_b32 v10, 4, v2")
    a("v_cmp_ne_u32 vcc, 0, v10")
    a("s_mov_b32 s30, 73728")
    a("s_mov_b32 s31, 0")
    a("s_waitcnt lgkmcnt(0)")
    srd(a, 8, 6, 7, WS_LIMIT)
    a(f"s_mov_b32 s32, {KEY_OFF}")
    a("buffer_load_dwordx4 v[16:19], v12, s[8:11], s32 offen")
    a("v_mov_b32 v10, s24"); a("v_mov_b32 v11, s26")
    a("v_cndmask_b32 v10, v10, v11, vcc")
    a("v_mov_b32 v11, s25"); a("v_mov_b32 v13, s27")
    a("v_cndmask_b32 v11, v11, v13, vcc")
    a("v_lshl_add_u64 v[6:7], v[6:7], 0, v[10:11]")
    GU = 32
    for i in range(8):
        a(f"global_load_dwordx4 v[{GU+4*i}:{GU+4*i+3}], v[6:7], off")
        if i < 7: a("v_lshl_add_u64 v[6:7], v[6:7], 0, s[30:31]")
    srd(a, 12, 28, 29, 4608*576*2)
    DN = 64
    a("s_movk_i32 s33, 9216"); a("s_movk_i32 s34, 18432"); a("s_movk_i32 s35, 27648")
    for i in range(4):
        so = "0" if i == 0 else f"s{32+i}"
        a(f"buffer_load_dwordx4 v[{DN+4*i}:{DN+4*i+3}], v8, s[12:15], {so} offen")
    a("v_bfe_u32 v13, v2, 1, 2")
    for j in range(4): a(f"v_cmp_eq_u32 s[{36+2*j}:{37+2*j}], {j}, v13")
    a("v_and_b32 v14, 1, v2")
    a("v_lshlrev_b32 v14, 4, v14")
    a("v_lshlrev_b32 v5, 1, v5")
    a("s_waitcnt vmcnt(12)")
    a("v_max_u32 v16, v16, v17")
    a("v_max3_u32 v16, v16, v18, v19")
    for m in ("row_shr:1", "row_shr:2", "row_shr:4", "row_shr:8"):
        a(f"v_max_u32_dpp v16, v16, v16 {m} row_mask:0xf bank_mask:0xf")
    for m in ("row_bcast:15 row_mask:0xa", "row_bcast:31 row_mask:0xc"):
        a(f"v_max_u32_dpp v16, v16, v16 {m} bank_mask:0xf")
    a("v_readlane_b32 s44, v16, 63")
    a("s_and_b32 s45, s44, 63")
    a("s_lshl_b32 s45, s45, 2")
    a("s_bfe_u32 s46, s44, 0x20009")
    a("s_add_u32 s45, s45, s46")
    a(f"s_mul_i32 s45, s45, {SLOT}")
    a(f"s_add_u32 s45, s45, {ROW_OFF}")
    for i in range(8):
        a(f"buffer_load_ushort v{20+i}, v5, s[8:11], s45 offen offset:{16*i}")
    a("s_cmp_lg_u32 s2, 0")
    a("s_cbranch_scc1 .Lk3_nocopy")
    a("v_lshlrev_b32 v15, 3, v0")
    a("v_min_u32 v15, 2552, v15")
    a("buffer_load_dwordx2 v[28:29], v15, s[8:11], s45 offen")
    a(f"s_mov_b32 s46, {WIN_OFF}")
    a("s_waitcnt vmcnt(0)")
    a("buffer_store_dwordx2 v[28:29], v15, s[8:11], s46 offen")
    a.label(".Lk3_nocopy")
    a("s_waitcnt vmcnt(0)")
    AO = [80, 84]
    for i in range(8):
        b = AO[i & 1]
        a(f"v_lshlrev_b32 v{20+i}, v14, v{20+i}")
        for j in range(4): a(f"v_cndmask_b32 v{b+j}, 0, v{20+i}, s[{36+2*j}:{37+2*j}]")
        c = "0" if i == 0 else "v[88:91]"
        a(f"v_mfma_f32_16x16x32_bf16 v[88:91], v[{b}:{b+3}], v[{GU+4*i}:{GU+4*i+3}], {c}")
    a("s_lshl_b32 s47, s18, 9")
    a("v_lshrrev_b32 v15, 3, v2")
    a("v_lshlrev_b32 v15, 8, v15")
    a("v_lshl_add_u32 v15, v9, 5, v15")
    a("v_and_b32 v16, 1, v3")
    a("v_lshl_add_u32 v15, v16, 4, v15")
    a("v_add_u32 v16, s47, v15")
    a("s_mov_b32 exec_lo, 0x00ff00ff")
    a("s_mov_b32 exec_hi, 0xff00ff00")
    a("ds_write_b128 v16, v[88:91]")
    a("s_mov_b64 exec, -1")
    a("v_lshlrev_b32 v17, 2, v1")
    a("s_waitcnt lgkmcnt(0)")
    a("s_barrier")
    for i in range(9):
        a(f"ds_read2st64_b32 v[{32+2*i}:{33+2*i}], v17 offset0:{2*i} offset1:{2*i+1}")
    a("s_waitcnt lgkmcnt(0)")
    for i in range(4): a(f"v_pk_add_f32 v[{32+2*i}:{33+2*i}], v[{32+2*i}:{33+2*i}], v[{40+2*i}:{41+2*i}]")
    for i in range(2): a(f"v_pk_add_f32 v[{32+2*i}:{33+2*i}], v[{32+2*i}:{33+2*i}], v[{36+2*i}:{37+2*i}]")
    a("v_pk_add_f32 v[32:33], v[32:33], v[34:35]")
    a("v_pk_add_f32 v[32:33], v[32:33], v[48:49]")
    a("v_add_f32 v32, v32, v33")
    a("v_cvt_pk_bf16_f32 v32, v32, v32")
    a("v_lshlrev_b32 v32, 16, v32")
    a(f"v_mul_f32 v33, {f32(-math.log2(math.e))}, v32")
    a("v_exp_f32 v33, v33")
    a("v_mov_b32 v34, v32")
    a("v_add_f32 v33, 1.0, v33")
    a("v_rcp_f32 v33, v33")
    a("v_mov_b32 v35, v32")
    a("v_mul_f32 v33, v33, v32")
    a("v_permlane32_swap_b32 v34, v35")
    a("v_cvt_pk_bf16_f32 v33, v33, v33")
    a("v_lshlrev_b32 v33, 16, v33")
    a("v_mul_f32 v33, v33, v35")
    a("v_cvt_pk_bf16_f32 v33, v33, 0")
    a("v_lshlrev_b32 v4, 2, v4")
    for i in range(4):
        a(f"ds_bpermute_b32 v{20+i}, v4, v33 offset:{32*i}")
    a("s_waitcnt lgkmcnt(0)")
    for i in range(4):
        b = AO[i & 1]
        a(f"v_lshlrev_b32 v{20+i}, v14, v{20+i}")
        for j in range(4): a(f"v_cndmask_b32 v{b+j}, 0, v{20+i}, s[{36+2*j}:{37+2*j}]")
        c = "0" if i == 0 else "v[88:91]"
        a(f"v_mfma_f32_16x16x32_bf16 v[88:91], v[{b}:{b+3}], v[{DN+4*i}:{DN+4*i+3}], {c}")
    a("v_lshrrev_b32 v16, 3, v2")
    a("v_mul_u32_u24 v16, 0x900, v16")
    a("v_and_b32 v15, 0xff, v15")
    a("v_add_u32 v16, v16, v15")
    a("s_mul_i32 s47, s16, 4608")
    a("s_lshl_b32 s48, s18, 8")
    a("s_add_u32 s47, s47, s48")
    a(f"s_add_u32 s47, s47, {PART_OFF}")
    a("s_mov_b32 exec_lo, 0x00ff00ff")
    a("s_mov_b32 exec_hi, 0xff00ff00")
    a("buffer_store_dwordx4 v[88:91], v16, s[8:11], s47 offen")
    a.label(".Lk3_end")
    a("s_endpgm")
    return dict(vgpr=96, lds=18*256, grid=144, block=576)

def k4(a):
    a.raw(".p2align 8"); a.raw(".globl k4_kernel"); a.raw(".type k4_kernel,@function")
    a.label("k4_kernel")
    a("s_cmp_ge_u32 s2, 36")
    a("s_cbranch_scc1 .Lk4_end")
    a("s_load_dwordx2 s[6:7], s[0:1], 96")
    a("s_load_dwordx2 s[22:23], s[0:1], 80")
    a("v_lshrrev_b32 v1, 2, v0")
    a("v_and_b32 v2, 3, v0")
    a("v_mul_u32_u24 v3, 0x900, v1")
    a("v_lshl_add_u32 v3, v2, 4, v3")
    a("s_lshl_b32 s16, s2, 6")
    a("v_add_u32 v3, s16, v3")
    a("v_and_b32 v4, 15, v0")
    a("s_lshl_b32 s17, s2, 5")
    a("v_lshl_add_u32 v4, v4, 1, s17")
    a("v_mov_b32 v5, 0")
    a("s_waitcnt lgkmcnt(0)")
    srd(a, 8, 6, 7, PART_BYTES, off=PART_OFF)
    for i in range(5):
        if i: a(f"s_mov_b32 s18, {i*64*2304}")
        so = "s18" if i else "0"
        a(f"buffer_load_dwordx4 v[{8+4*i}:{11+4*i}], v3, s[8:11], {so} offen")
    srd(a, 12, 6, 7, SLOT, off=WIN_OFF)
    a("buffer_load_ushort v30, v4, s[12:15], 0 offen")
    a("buffer_load_ushort v31, v4, s[12:15], 0 offen offset:1152")
    a("buffer_load_dwordx2 v[32:33], v5, s[12:15], 0 offen offset:2304")
    srd(a, 12, 22, 23, X_BYTES)
    a("s_waitcnt vmcnt(3)")
    for i in range(1, 5):
        for k in (0, 2):
            a(f"v_pk_add_f32 v[{8+k}:{9+k}], v[{8+k}:{9+k}], v[{8+4*i+k}:{9+4*i+k}]")
    for m in ("row_shr:4", "row_shr:8"):
        for k in range(4):
            a(f"v_add_f32_dpp v{8+k}, v{8+k}, v{8+k} {m} row_mask:0xf bank_mask:0xf bound_ctrl:1")
    a("v_lshrrev_b32 v6, 4, v0")
    a("v_lshlrev_b32 v6, 6, v6")
    a("v_lshl_add_u32 v6, v2, 4, v6")
    a("s_mov_b32 exec_lo, 0xf000f000")
    a("s_mov_b32 exec_hi, 0xf000f000")
    a("ds_write_b128 v6, v[8:11]")
    a("s_mov_b64 exec, -1")
    a("s_waitcnt lgkmcnt(0)")
    a("s_barrier")
    a("v_cmp_gt_u32 vcc, 16, v0")
    a("s_and_saveexec_b64 s[20:21], vcc")
    a("s_cbranch_execz .Lk4_end")
    a("v_lshlrev_b32 v6, 2, v0")
    for i in range(8):
        a(f"ds_read2_b32 v[{8+2*i}:{9+2*i}], v6 offset0:{32*i} offset1:{32*i+16}")
    a("s_waitcnt vmcnt(0) lgkmcnt(0)")
    for i in range(4): a(f"v_pk_add_f32 v[{8+2*i}:{9+2*i}], v[{8+2*i}:{9+2*i}], v[{16+2*i}:{17+2*i}]")
    for i in range(2): a(f"v_pk_add_f32 v[{8+2*i}:{9+2*i}], v[{8+2*i}:{9+2*i}], v[{12+2*i}:{13+2*i}]")
    a("v_pk_add_f32 v[8:9], v[8:9], v[10:11]")
    a("v_add_f32 v8, v8, v9")
    def rnd(v):
        a(f"v_cvt_pk_bf16_f32 v{v}, v{v}, v{v}")
        a(f"v_lshlrev_b32 v{v}, 16, v{v}")
    rnd(8)
    rnd(32)
    a(f"v_mul_f32 v32, {f32(-math.log2(math.e))}, v32")
    a("v_exp_f32 v32, v32")
    a("v_add_f32 v32, 1.0, v32")
    a("v_rcp_f32 v32, v32")
    rnd(32)
    a("v_mul_f32 v8, v8, v32")
    rnd(8)
    a("v_lshlrev_b32 v30, 16, v30")
    a("v_lshlrev_b32 v31, 16, v31")
    a("v_add_f32 v8, v8, v30")
    rnd(8)
    a("v_add_f32 v8, v8, v31")
    a("v_cvt_pk_bf16_f32 v8, v8, v8")
    a("v_and_b32 v33, 0x7ff, v33")
    a("v_mul_u32_u24 v33, 0x480, v33")
    a("v_add_u32 v4, v4, v33")
    a("buffer_store_short v8, v4, s[12:15], 0 offen")
    a.label(".Lk4_end")
    a("s_endpgm")
    return dict(vgpr=40, lds=1024, grid=36, block=256)

def main():
    hdr = open("cdna_kernels/%s.s.ref" % NAME).read().split("\n")
    hdr = [l for l in hdr if l.startswith(";") and "@launch" not in l and "Override" not in l and "grid=ceil" not in l]
    a = Asm()
    infos = []
    for nm, fn in (("k1", k1), ("k2", k2), ("k3", k3), ("k4", k4)):
        infos.append((nm, fn(a)))
    a.raw(".p2align 6"); a.raw(".Ltext_end:")
    out = hdr[:]
    for nm, inf in infos:
        out.append(f"; @launch kernel={nm}_kernel grid=({inf['grid']},1,1) block=({inf['block']},1,1) lds={inf['lds']}")
    out.append('.amdgcn_target "amdgcn-amd-amdhsa--gfx950"')
    out.append(".text")
    out.append(a.text())
    out.append('.section .rodata,"a"')
    for nm, inf in infos:
        v = inf["vgpr"]
        out.append(".p2align 6")
        out.append(f".amdhsa_kernel {nm}_kernel")
        out.append(f"  .amdhsa_next_free_vgpr {v}")
        out.append("  .amdhsa_next_free_sgpr 96")
        out.append(f"  .amdhsa_accum_offset {(v+3)//4*4}")
        out.append("  .amdhsa_group_segment_fixed_size 0")
        out.append("  .amdhsa_kernarg_size 104")
        out.append("  .amdhsa_user_sgpr_count 2")
        out.append("  .amdhsa_user_sgpr_kernarg_segment_ptr 1")
        out.append("  .amdhsa_system_sgpr_workgroup_id_x 1")
        out.append(".end_amdhsa_kernel")
    path = OPT.get("out") or "cdna_kernels/%s.s" % NAME
    open(path, "w").write("\n".join(out) + "\n")
    print("instrs", a.count, "nops", a.nops, file=sys.stderr)

if __name__ == "__main__":
    main()
```
